```python
import torch

def _softmax(x, axis=-1):
    return torch.softmax(x, dim=axis)
def _gelu(x):
    return torch.nn.functional.gelu(x, approximate="tanh")
def _silu(x):
    return torch.nn.functional.silu(x)
def _sigmoid(x):
    return torch.sigmoid(x)
def _layernorm(x, axis=-1, eps=1e-5):
    m = x.mean(dim=axis, keepdim=True)
    v = x.var(dim=axis, keepdim=True, unbiased=False)
    return (x - m) / torch.sqrt(v + eps)
def _scatter_add(tgt, idx, src, axis=0):
    return tgt.clone().index_add_(axis, idx, src)
def _segment_sum(src, seg, n):
    out = torch.zeros((n,) + src.shape[1:], dtype=src.dtype)
    return out.index_add_(0, seg, src)
def _pad(x, pw):
    flat = tuple(v for pair in reversed(pw) for v in pair)
    return torch.nn.functional.pad(x, flat)

kernel_name = 'interleave_layers__grouped_kv_mqa__sliding_block__prompt'

def setup_inputs():

    _w = (lambda a: (lambda t: t.to(torch.bfloat16) if t.is_floating_point() else t)(torch.as_tensor(a)))
    def _A_setup():
        B, S, D, H = 1, 2048, 640, 32
        Dh = D // H
        return {
            "x": _w((lambda *s: torch.randn(*s, dtype=torch.bfloat16) * 0.05)(B, S, D)),
            "wq": _w((lambda *s: torch.randn(*s, dtype=torch.bfloat16) * 0.05)(D, H * Dh)),
            "wk": _w((lambda *s: torch.randn(*s, dtype=torch.bfloat16) * 0.05)(D, Dh)),
            "wv": _w((lambda *s: torch.randn(*s, dtype=torch.bfloat16) * 0.05)(D, Dh)),
            "wo": _w((lambda *s: torch.randn(*s, dtype=torch.bfloat16) * 0.05)(H * Dh, D)),
        }
    _A_in = _A_setup()

    def _B_setup():
        B, S, D = 1, 2048, 640
        return {
            "x": _w((lambda *s: torch.randn(*s, dtype=torch.bfloat16) * 0.05)(B, S, D)),
            "wqkv": _w((lambda *s: torch.randn(*s, dtype=torch.bfloat16) * 0.05)(D, 3 * D)),
            "wo": _w((lambda *s: torch.randn(*s, dtype=torch.bfloat16) * 0.05)(D, D)),
        }
    _B_in = _B_setup()

    return {
        "A_x": _A_in["x"],
        "A_wq": _A_in["wq"],
        "A_wk": _A_in["wk"],
        "A_wv": _A_in["wv"],
        "A_wo": _A_in["wo"],
        "B_x": _B_in["x"],
        "B_wqkv": _B_in["wqkv"],
        "B_wo": _B_in["wo"],
    }

def reference(A_x, A_wq, A_wk, A_wv, A_wo, B_x, B_wqkv, B_wo):
    def _A_ref(x, wq, wk, wv, wo):
        B, S, D = x.shape
        H = 32
        Dh = D // H
        q = (lambda x, *d: x.permute(*d))((x @ wq).reshape(B, S, H, Dh), 0, 2, 1, 3)
        k = x @ wk
        v = x @ wv
        scores = torch.einsum("bhqd,bkd->bhqk", q, k) * (Dh ** -0.5)
        p = _softmax(scores, axis=-1)
        o = torch.einsum("bhqk,bkd->bhqd", p, v)
        return (lambda x, *d: x.permute(*d))(o, 0, 2, 1, 3).reshape(B, S, H * Dh) @ wo

    def _B_ref(x, wqkv, wo):
        B, S, D = x.shape
        H = 32; Dh = D // H; W = 256
        qkv = (lambda x, *d: x.permute(*d))((x @ wqkv).reshape(B, S, 3, H, Dh), 2, 0, 3, 1, 4)
        q, k, v = qkv[0], qkv[1], qkv[2]
        scores = torch.einsum("bhqd,bhkd->bhqk", q, k) * (Dh ** -0.5)
        idx = torch.arange(S)
        mask = (idx[:, None] - idx[None, :] >= 0) & (idx[:, None] - idx[None, :] < W)
        scores = torch.where(mask[None, None], scores, -1e9)
        p = _softmax(scores, axis=-1)
        o = torch.einsum("bhqk,bhkd->bhqd", p, v)
        return (lambda x, *d: x.permute(*d))(o, 0, 2, 1, 3).reshape(B, S, D) @ wo

    x = A_x
    x = x + _A_ref(_layernorm(x, axis=-1), A_wq, A_wk, A_wv, A_wo)
    x = x + _B_ref(_layernorm(x, axis=-1), B_wqkv, B_wo)
    x = x + _A_ref(_layernorm(x, axis=-1), A_wq, A_wk, A_wv, A_wo)
    x = x + _B_ref(_layernorm(x, axis=-1), B_wqkv, B_wo)
    return x
```

```python
class Asm:
    def __init__(self):
        self.lines = []
    def __call__(self, s):
        self.lines.append("    " + s)
    def label(self, l):
        self.lines.append(l + ":")
    def raw(self, s):
        self.lines.append(s)
    def c(self, s):
        self.lines.append("    ; " + s)
    def text(self):
        return "\n".join(self.lines) + "\n"

def vr(a, n=1):
    return f"v{a}" if n == 1 else f"v[{a}:{a+n-1}]"
def sr(a, n=1):
    return f"s{a}" if n == 1 else f"s[{a}:{a+n-1}]"
```

```python
from asmlib import *
from gemm import KA, QBUF, OBUF, KIMG, VIMG, f32bits

THRESH = 8.0

def softmax_tile(a, name, tag, S, P, NEG, O, masked=False):
    a(f"v_max3_f32 v40, v{S}, v{S+1}, v{S+2}")
    for r in range(3, 15, 2):
        a(f"v_max3_f32 v40, v40, v{S+r}, v{S+r+1}")
    a(f"v_max_f32 v40, v40, v{S+15}")
    a(f"v_cmp_lt_f32 vcc, s60, v40")
    a(f"s_cbranch_vccz {name}_ok{tag}")
    a("v_mov_b32 v41, v40")
    a("s_nop 1")
    a("v_permlane32_swap_b32 v41, v40")
    a("s_nop 1")
    a("v_max_f32 v40, v40, v41")
    a("v_max_f32 v40, 0, v40")
    a("v_sub_f32 v41, 0, v40")
    a("v_exp_f32 v41, v41")
    a("s_nop 0")
    for r in range(16):
        a(f"v_mul_f32 v{O+r}, v{O+r}, v41")
        a(f"v_sub_f32 v{S+r}, v{S+r}, v40")
        a(f"v_sub_f32 v{NEG+r}, v{NEG+r}, v40")
    a.label(f"{name}_ok{tag}")
    for r in range(16):
        a(f"v_exp_f32 v{S+r}, v{S+r}")
    a("s_nop 0")
    for r in range(8):
        a(f"v_cvt_pk_bf16_f32 v{P+r}, v{S+2*r}, v{S+2*r+1}")

def first_tile_fix(a, S, NEG):
    a(f"v_max3_f32 v40, v{S}, v{S+1}, v{S+2}")
    for r in range(3, 15, 2):
        a(f"v_max3_f32 v40, v40, v{S+r}, v{S+r+1}")
    a(f"v_max_f32 v40, v40, v{S+15}")
    a("v_mov_b32 v41, v40")
    a("s_nop 1")
    a("v_permlane32_swap_b32 v41, v40")
    a("s_nop 1")
    a("v_max_f32 v40, v40, v41")
    for r in range(16):
        a(f"v_sub_f32 v{S+r}, v{S+r}, v40")
        a(f"v_sub_f32 v{NEG+r}, 0, v40")

def epilogue_store(a, O, rowbytes_reg):
    a(f"v_mov_b32 v40, v{O+8}")
    a(f"v_mov_b32 v41, v{O+8}")
    a("s_nop 1")
    a("v_permlane32_swap_b32 v40, v41")
    a("s_nop 1")
    a("v_rcp_f32 v41, v41")
    a("s_nop 0")
    for r in range(12):
        a(f"v_mul_f32 v{O+r}, v{O+r}, v41")
    for q in range(3):
        a(f"v_cvt_pk_bf16_f32 v{42}, v{O+4*q}, v{O+4*q+1}")
        a(f"v_cvt_pk_bf16_f32 v{43}, v{O+4*q+2}, v{O+4*q+3}")
        if q < 2:
            a(f"buffer_store_dwordx2 v[42:43], v{rowbytes_reg}, s[20:23], 0 offen offset:{16*q}")
        else:
            a("v_cmp_eq_u32 vcc, 0, v3")
            a("s_and_saveexec_b64 s[50:51], vcc")
            a(f"buffer_store_dwordx2 v[42:43], v{rowbytes_reg}, s[20:23], 0 offen offset:{16*q}")
            a("s_mov_b64 exec, s[50:51]")

def common_setup(a, name, ngrid):
    a.raw(f".globl {name}")
    a.raw(".p2align 8")
    a.raw(f".type {name},@function")
    a.label(name)
    a(f"s_cmp_ge_u32 s2, {ngrid}")
    a(f"s_cbranch_scc1 {name}_done")
    a(f"s_load_dwordx2 s[4:5], s[0:1], {KA['ws']}")
    a("v_and_b32 v1, 63, v0")
    a("v_lshrrev_b32 v2, 6, v0")
    a("v_lshrrev_b32 v3, 5, v1")
    a("s_waitcnt lgkmcnt(0)")
    for (b, ofs, sz) in ((8, QBUF, 2048*1280), (12, KIMG, 32*2048*64), (16, VIMG, 32*2048*64), (20, OBUF, 2048*1280)):
        a(f"s_add_u32 s{b}, s4, {ofs}"); a(f"s_addc_u32 s{b+1}, s5, 0")
        a(f"s_mov_b32 s{b+2}, {sz}"); a(f"s_mov_b32 s{b+3}, 0x00020000")
    a(f"s_mov_b32 s60, {f32bits(THRESH):#x}")

def frag_addrs(a):
    a("v_and_b32 v4, 31, v1")
    a("v_lshrrev_b32 v5, 2, v4")
    a("v_and_b32 v5, 3, v5")
    a("v_xor_b32 v6, v3, v5")
    a("v_lshlrev_b32 v4, 6, v4")
    a("v_lshl_add_u32 v10, v6, 4, v4")
    a("v_add_u32 v6, 2, v3")
    a("v_xor_b32 v6, v6, v5")
    a("v_lshl_add_u32 v11, v6, 4, v4")
    a("v_and_b32 v4, 15, v1")
    a("v_lshrrev_b32 v4, 2, v4")
    a("v_lshl_add_u32 v4, v3, 2, v4")
    a("v_lshlrev_b32 v4, 6, v4")
    a("v_lshrrev_b32 v5, 4, v1")
    a("v_and_b32 v5, 1, v5")
    a("v_lshl_add_u32 v4, v5, 5, v4")
    a("v_and_b32 v5, 3, v1")
    a("v_lshl_add_u32 v12, v5, 3, v4")

def load_q(a, qaddr):
    a(f"buffer_load_dwordx4 v[16:19], v{qaddr}, s[8:11], 0 offen")
    a(f"v_lshlrev_b32 v5, 4, v3")
    a(f"v_sub_u32 v5, v{qaddr}, v5")
    a(f"buffer_load_dwordx2 v[20:21], v5, s[8:11], 0 offen offset:32")
    a("v_mov_b32 v22, 0"); a("v_mov_b32 v23, 0")
    a("s_waitcnt vmcnt(0)")
    a("v_cmp_eq_u32 vcc, 0, v3")
    a("s_nop 1")
    a("v_cndmask_b32 v20, 0, v20, vcc")
    a("v_cndmask_b32 v21, 0, v21, vcc")

def tile_reads(a, base):
    a(f"ds_read_b128 v[24:27], v10 offset:{base}")
    a(f"ds_read_b128 v[28:31], v11 offset:{base}")
    for j in range(2):
        for u in range(2):
            a(f"ds_read_b64_tr_b16 v[{32+4*j+2*u}:{33+4*j+2*u}], v12 offset:{base + 16384 + j*1024 + u*512}")

S = 64; NEG = 80; O = 96; P = 112

def attnA_kernel(a, name):
    common_setup(a, name, 256)
    frag_addrs(a)
    a("s_lshl_b32 s3, s2, 3")
    a("v_add_u32 v4, s3, v2")
    a("v_mul_u32_u24 v4, 1280, v4")
    a("v_and_b32 v5, 31, v1")
    a("v_mul_u32_u24 v5, 40, v5")
    a("v_add_u32 v13, v4, v5")
    a("v_lshl_add_u32 v4, v3, 4, v13")
    load_q(a, 4)
    for r in range(16):
        a(f"v_mov_b32 v{O+r}, 0")
        a(f"v_mov_b32 v{NEG+r}, 0")
    a("v_lshlrev_b32 v14, 4, v1")
    a("v_lshl_add_u32 v14, v2, 11, v14")
    a("s_mov_b32 s32, 0")
    def dma(buf):
        a("v_readfirstlane_b32 s3, v2")
        a("s_lshl_b32 s3, s3, 11")
        for part in range(2):
            for i in range(2):
                a(f"s_add_u32 s33, s3, {buf*32768 + part*16384}")
                a("s_mov_b32 m0, s33")
                a("s_nop 0")
                a(f"buffer_load_dwordx4 v14, s[{12+4*part}:{15+4*part}], s32 offen offset:{i*1024} lds")
        a("s_add_u32 s32, s32, 16384")
    dma(0)
    a("s_mov_b32 s48, 0")
    a.label(f"{name}_loop")
    for buf in range(2):
        a("s_waitcnt vmcnt(0)")
        a("s_barrier")
        a(f"s_add_u32 s3, s48, {buf}")
        a("s_cmp_ge_u32 s3, 7")
        a(f"s_cbranch_scc1 {name}_nopf{buf}")
        dma(1 - buf)
        a.label(f"{name}_nopf{buf}")
        for t in range(8):
            tile_reads(a, buf * 32768 + t * 2048)
            a("s_waitcnt lgkmcnt(0)")
            a(f"v_mfma_f32_32x32x16_bf16 v[{S}:{S+15}], v[24:27], v[16:19], v[{NEG}:{NEG+15}]")
            a(f"v_mfma_f32_32x32x16_bf16 v[{S}:{S+15}], v[28:31], v[20:23], v[{S}:{S+15}]")
            a("s_nop 15")
            tag = f"_{buf}_{t}"
            if buf == 0 and t == 0:
                a("s_cmp_lg_u32 s48, 0")
                a(f"s_cbranch_scc1 {name}_nf")
                first_tile_fix(a, S, NEG)
                a.label(f"{name}_nf")
            softmax_tile(a, name, tag, S, P, NEG, O)
            a("s_nop 1")
            a(f"v_mfma_f32_32x32x16_bf16 v[{O}:{O+15}], v[32:35], v[{P}:{P+3}], v[{O}:{O+15}]")
            a(f"v_mfma_f32_32x32x16_bf16 v[{O}:{O+15}], v[36:39], v[{P+4}:{P+7}], v[{O}:{O+15}]")
    a("s_add_u32 s48, s48, 2")
    a("s_cmp_lt_u32 s48, 8")
    a(f"s_cbranch_scc1 {name}_loop")
    a("s_nop 15")
    a("v_lshl_add_u32 v13, v3, 3, v13")
    epilogue_store(a, O, 13)
    a("s_waitcnt vmcnt(0)")
    a.label(f"{name}_done")
    a("s_endpgm")
    return dict(name=name, grid=256, lds=65536, vgpr=128, sgpr=64, block=512)

def attnB_kernel(a, name):
    common_setup(a, name, 512)
    frag_addrs(a)
    a("s_and_b32 s34, s2, 31")
    a("s_lshr_b32 s35, s2, 5")
    a("s_lshl_b32 s35, s35, 7")
    a("v_and_b32 v5, 31, v1")
    a("v_lshl_add_u32 v4, v2, 5, v5")
    a("v_add_u32 v4, s35, v4")
    a("v_mul_u32_u24 v4, 1280, v4")
    a("s_mul_i32 s3, s34, 40")
    a("v_add_u32 v13, s3, v4")
    a("v_lshl_add_u32 v4, v3, 4, v13")
    load_q(a, 4)
    for r in range(16):
        a(f"v_mov_b32 v{O+r}, 0")
        a(f"v_mov_b32 v{NEG+r}, 0")
    a("v_lshlrev_b32 v14, 4, v1")
    a("v_lshl_add_u32 v14, v2, 10, v14")
    a("s_lshl_b32 s3, s34, 17")
    a("s_lshl_b32 s33, s35, 6")
    a("s_add_u32 s3, s3, s33")
    a("s_sub_u32 s38, 256, s35")
    a("s_max_i32 s38, s38, 0")
    a("s_lshl_b32 s38, s38, 6")
    a("s_add_u32 s3, s3, s38")
    a("s_sub_u32 s3, s3, 16384")
    a("v_add_u32 v14, s3, v14")
    a("v_readfirstlane_b32 s3, v2")
    a("s_lshl_b32 s3, s3, 10")
    a("s_add_u32 s3, s3, s38")
    for part in range(2):
        for i in range(6):
            a(f"s_add_u32 s33, s3, {part*16384*2 + i*4096}")
            a("s_mov_b32 m0, s33")
            a(f"s_mov_b32 s37, {i*4096}")
            a(f"buffer_load_dwordx4 v14, s[{12+4*part}:{15+4*part}], s37 offen lds")
    a("s_waitcnt vmcnt(0)")
    a("s_barrier")
    a("v_lshlrev_b32 v5, 11, v2")
    a("v_add_u32 v10, v10, v5"); a("v_add_u32 v11, v11, v5"); a("v_add_u32 v12, v12, v5")
    a("v_readfirstlane_b32 s36, v2")
    a("s_lshl_b32 s36, s36, 5")
    a("s_add_u32 s36, s36, s35")
    order = [8, 0, 1, 2, 3, 4, 5, 6, 7]
    for n, i in enumerate(order):
        if i < 8:
            a(f"s_cmp_lt_u32 s36, {256 - 32*i}")
            a(f"s_cbranch_scc1 {name}_skip{i}")
        def rd(base):
            a(f"ds_read_b128 v[24:27], v10 offset:{base}")
            a(f"ds_read_b128 v[28:31], v11 offset:{base}")
            for j in range(2):
                for u in range(2):
                    a(f"ds_read_b64_tr_b16 v[{32+4*j+2*u}:{33+4*j+2*u}], v12 offset:{base + 32768 + j*1024 + u*512}")
        rd(i * 2048)
        a("s_waitcnt lgkmcnt(0)")
        a(f"v_mfma_f32_32x32x16_bf16 v[{S}:{S+15}], v[24:27], v[16:19], v[{NEG}:{NEG+15}]")
        a(f"v_mfma_f32_32x32x16_bf16 v[{S}:{S+15}], v[28:31], v[20:23], v[{S}:{S+15}]")
        a("s_nop 15")
        if i in (0, 8):
            a("v_and_b32 v4, 31, v1")
            a("v_lshlrev_b32 v5, 2, v3")
            a("v_sub_u32 v4, v4, v5")
            a("v_mov_b32 v6, 0xff7fffff")
            for r in range(16):
                jj = 8 * (r >> 2) + (r & 3)
                if i == 8:
                    a(f"v_cmp_gt_i32 vcc, {jj}, v4")
                else:
                    a(f"v_cmp_le_i32 vcc, {jj}, v4")
                a(f"v_cndmask_b32 v{S+r}, v{S+r}, v6, vcc")
        if n == 0:
            first_tile_fix(a, S, NEG)
        softmax_tile(a, name, f"_{i}", S, P, NEG, O)
        a("s_nop 1")
        a(f"v_mfma_f32_32x32x16_bf16 v[{O}:{O+15}], v[32:35], v[{P}:{P+3}], v[{O}:{O+15}]")
        a(f"v_mfma_f32_32x32x16_bf16 v[{O}:{O+15}], v[36:39], v[{P+4}:{P+7}], v[{O}:{O+15}]")
        if i < 8:
            a.label(f"{name}_skip{i}")
    a("s_nop 15")
    a("v_lshl_add_u32 v13, v3, 3, v13")
    epilogue_store(a, O, 13)
    a("s_waitcnt vmcnt(0)")
    a.label(f"{name}_done")
    a("s_endpgm")
    return dict(name=name, grid=512, lds=32768*2+16384, vgpr=128, sgpr=64, block=256)
```

```python
from asmlib import *

X1 = 0x000000; X2 = 0x280000; X3 = 0x500000
QBUF = 0x780000; OBUF = 0xA00000
KIMG = 0xC80000; VIMG = 0x1080000
WS_BYTES = 0x1480000
KA = dict(A_x=0, A_wq=8, A_wk=16, A_wv=24, A_wo=32, B_x=40, B_wqkv=48, B_wo=56, out=64, dbg=72, ws=80)
QSCALE = (20 ** -0.5) * 1.4426950408889634

import struct
def f32bits(x):
    return struct.unpack("<I", struct.pack("<f", x))[0]

def gemm_kernel(a, name, mode, BM, BN, xin, xout=None):
    TM = BM // 64; TN = BN // 64
    NP = BN // 32
    XB = BM * 128; WB = NP * 4096; BUF = XB + WB
    is_qkv = mode.startswith('qkv')
    if mode == 'qkvA':
        N = 640; NBN = N // BN + 1; wstride = 1280
    elif mode == 'qkvB':
        N = 1920; NBN = N // BN; wstride = 3840
    else:
        N = 640; NBN = N // BN; wstride = 1280
    NBM = 2048 // BM
    lgm = NBM.bit_length() - 1
    NWG = NBM * NBN
    STAT_LDS = 2 * BUF
    lds = STAT_LDS + 4 * 64 * 4 * TN
    ACC = 64
    XF = [32, 32 + 4 * (TM + TN)]
    WF = [32 + 4 * TM, 32 + 4 * (TM + TN) + 4 * TM]
    SX = 20; SXX = 22; CS = 24
    a.raw(f".globl {name}")
    a.raw(".p2align 8")
    a.raw(f".type {name},@function")
    a.label(name)
    a(f"s_cmp_ge_u32 s2, {NWG}")
    a(f"s_cbranch_scc1 {name}_done")
    a(f"s_load_dwordx2 s[4:5], s[0:1], {KA['ws']}")
    if xin[0] == 'arg':
        a(f"s_load_dwordx2 s[6:7], s[0:1], {xin[1]}")
    wname = {'qkvA': 'A_wq', 'qkvB': 'B_wqkv', 'oprojA': 'A_wo', 'oprojB': 'B_wo'}[mode]
    a(f"s_load_dwordx2 s[12:13], s[0:1], {KA[wname]}")
    if mode == 'qkvA':
        a(f"s_load_dwordx2 s[40:41], s[0:1], {KA['A_wk']}")
        a(f"s_load_dwordx2 s[16:17], s[0:1], {KA['A_wv']}")
    if xout is not None and xout[0] == 'arg':
        a(f"s_load_dwordx2 s[42:43], s[0:1], {xout[1]}")
    a(f"s_and_b32 s34, s2, {NBM-1}")
    a(f"s_lshr_b32 s35, s2, {lgm}")
    a(f"s_mov_b32 s37, s35")
    a(f"s_mul_i32 s34, s34, {BM}")
    a(f"s_mul_i32 s35, s35, {BN}")
    a("v_and_b32 v1, 63, v0")
    a("v_lshrrev_b32 v2, 6, v0")
    a("v_lshrrev_b32 v3, 5, v1")
    a("s_waitcnt lgkmcnt(0)")
    if is_qkv:
        if xin[0] == 'arg':
            a("s_mov_b32 s8, s6"); a("s_mov_b32 s9, s7")
        else:
            a(f"s_add_u32 s8, s4, {xin[1]}"); a("s_addc_u32 s9, s5, 0")
    else:
        a(f"s_add_u32 s8, s4, {OBUF}"); a("s_addc_u32 s9, s5, 0")
    a(f"s_mov_b32 s10, {2048*1280}")
    a("s_mov_b32 s11, 0x00020000")
    a(f"s_mov_b32 s14, {640*wstride}")
    a("s_mov_b32 s15, 0x00020000")
    if mode == 'qkvA':
        a("s_mov_b32 s18, 25600"); a("s_mov_b32 s19, 0x00020000")
        a(f"s_cmp_lg_u32 s37, {NBN-1}")
        a(f"s_cbranch_scc1 {name}_notkv")
        a("s_mov_b32 s12, s40"); a("s_mov_b32 s13, s41"); a("s_mov_b32 s14, 25600")
        a.label(f"{name}_notkv")
    if is_qkv:
        a(f"s_add_u32 s20, s4, {QBUF}"); a("s_addc_u32 s21, s5, 0")
        a(f"s_mov_b32 s22, {2048*1280}"); a("s_mov_b32 s23, 0x00020000")
        a(f"s_add_u32 s24, s4, {KIMG}"); a("s_addc_u32 s25, s5, 0")
        a(f"s_mov_b32 s26, {32*2048*64}"); a("s_mov_b32 s27, 0x00020000")
        a(f"s_add_u32 s28, s4, {VIMG}"); a("s_addc_u32 s29, s5, 0")
        a(f"s_mov_b32 s30, {32*2048*64}"); a("s_mov_b32 s31, 0x00020000")
    else:
        if xout[0] == 'arg':
            a("s_mov_b32 s20, s42"); a("s_mov_b32 s21, s43")
        else:
            a(f"s_add_u32 s20, s4, {xout[1]}"); a("s_addc_u32 s21, s5, 0")
        a(f"s_mov_b32 s22, {2048*1280}"); a("s_mov_b32 s23, 0x00020000")
        if xin[0] == 'arg':
            a("s_mov_b32 s24, s6"); a("s_mov_b32 s25, s7")
        else:
            a(f"s_add_u32 s24, s4, {xin[1]}"); a("s_addc_u32 s25, s5, 0")
        a(f"s_mov_b32 s26, {2048*1280}"); a("s_mov_b32 s27, 0x00020000")
    a("s_mov_b32 s36, 0x3f803f80")
    nxt = BM // 32
    a("v_lshrrev_b32 v17, 3, v1")
    a(f"v_mul_u32_u24 v18, {BM//4}, v2")
    a("v_add_u32 v18, v18, v17")
    a("v_and_b32 v19, 7, v1")
    for t in range(nxt):
        a("v_lshrrev_b32 v16, 1, v17")
        if t & 1:
            a("v_xor_b32 v16, 4, v16")
        a("v_xor_b32 v16, v16, v19")
        a("v_lshlrev_b32 v16, 4, v16")
        a(f"v_add_u32 v{4+t}, s34, v18")
        a(f"v_add_u32 v{4+t}, {8*t}, v{4+t}")
        a(f"s_mov_b32 s3, 1280")
        a(f"v_mul_lo_u32 v{4+t}, v{4+t}, s3")
        a(f"v_add_u32 v{4+t}, v{4+t}, v16")
    a("v_lshrrev_b32 v16, 2, v1")
    a("v_lshl_add_u32 v16, v2, 4, v16")
    a("v_and_b32 v17, 3, v1")
    a("v_lshlrev_b32 v17, 4, v17")
    if mode == 'qkvA':
        a(f"s_mov_b32 s38, {wstride}")
        a(f"s_cmp_lg_u32 s37, {NBN-1}")
        a(f"s_cselect_b32 s38, s38, 40")
        a(f"s_cselect_b32 s39, s35, 0")
    else:
        a(f"s_mov_b32 s38, {wstride}")
        a(f"s_mov_b32 s39, s35")
    a("v_mul_lo_u32 v16, v16, s38")
    a("v_add_u32 v16, v16, v17")
    a("s_lshl_b32 s3, s39, 1")
    a("v_add_u32 v8, s3, v16")
    for j in range(1, NP):
        if mode == 'qkvA':
            a(f"s_cmp_lg_u32 s37, {NBN-1}")
            a(f"s_cselect_b32 s3, {64*j}, 0")
            a(f"v_add_u32 v{8+j}, s3, v8")
        else:
            a(f"v_add_u32 v{8+j}, {64*j}, v8")
    a("v_and_b32 v16, 31, v1")
    a("v_and_b32 v17, 1, v2")
    a(f"v_mul_u32_u24 v17, {TM*32}, v17")
    a("v_add_u32 v17, v17, v16")
    a("v_lshrrev_b32 v16, 1, v16")
    a("v_and_b32 v16, 7, v16")
    a("v_lshlrev_b32 v17, 7, v17")
    for s in range(4):
        a(f"v_add_u32 v18, {2*s}, v3")
        a("v_xor_b32 v18, v18, v16")
        a(f"v_lshl_add_u32 v{12+s}, v18, 4, v17")
    a("v_lshrrev_b32 v17, 4, v1")
    a("v_and_b32 v17, 1, v17")
    a("v_lshlrev_b32 v17, 5, v17")
    a("v_and_b32 v18, 15, v1")
    a("v_lshrrev_b32 v18, 2, v18")
    a("v_lshl_add_u32 v18, v3, 3, v18")
    a("v_lshl_add_u32 v17, v18, 6, v17")
    a("v_and_b32 v18, 3, v1")
    a("v_lshl_add_u32 v17, v18, 3, v17")
    a("v_lshrrev_b32 v18, 1, v2")
    a(f"v_mul_u32_u24 v18, {TN*4096}, v18")
    a(f"v_add3_u32 v16, v17, v18, 0")
    a(f"v_add_u32 v16, {XB}, v16")
    for i in range(TM * TN * 16):
        a(f"v_mov_b32 v{ACC+i}, 0")
    for i in range(8):
        a(f"v_mov_b32 v{SX+i}, 0")
    a("s_mov_b32 s32, 0")
    a("s_mov_b32 s33, 0")

    def dma(buf):
        for t in range(nxt):
            a(f"v_readfirstlane_b32 s3, v2")
            a(f"s_mul_i32 s3, s3, {BM//4*128}")
            a(f"s_add_u32 s3, s3, {buf*BUF + t*1024}")
            a("s_mov_b32 m0, s3")
            a("s_nop 0")
            a(f"buffer_load_dwordx4 v{4+t}, s[8:11], s32 offen lds")
        for j in range(NP):
            a(f"v_readfirstlane_b32 s3, v2")
            a(f"s_lshl_b32 s3, s3, 10")
            a(f"s_add_u32 s3, s3, {buf*BUF + XB + j*4096}")
            a("s_mov_b32 m0, s3")
            a("s_nop 0")
            srd = "s[12:15]"
            if mode == 'qkvA' and j == 1:
                srd = "s[44:47]"
            a(f"buffer_load_dwordx4 v{8+j}, {srd}, s33 offen lds")
        a("s_add_u32 s32, s32, 128")
        a("s_mul_i32 s3, s38, 64")
        a("s_add_u32 s33, s33, s3")
    if mode == 'qkvA':
        a(f"s_cmp_lg_u32 s37, {NBN-1}")
        a("s_cselect_b32 s44, s12, s16"); a("s_cselect_b32 s45, s13, s17")
        a("s_cselect_b32 s46, s14, s18"); a("s_mov_b32 s47, 0x00020000")

    def reads(buf, s, fs):
        for i in range(TM):
            a(f"ds_read_b128 {vr(XF[fs]+4*i,4)}, v{12+s} offset:{buf*BUF + i*4096}")
        for j in range(TN):
            for u in range(2):
                a(f"ds_read_b64_tr_b16 {vr(WF[fs]+4*j+2*u,2)}, v16 offset:{buf*BUF + j*4096 + s*1024 + u*256}")
    def stats(fs):
        if not is_qkv: return
        for i in range(TM):
            for r in range(4):
                a(f"v_dot2_f32_bf16 v{SXX+i}, v{XF[fs]+4*i+r}, v{XF[fs]+4*i+r}, v{SXX+i}")
                a(f"v_dot2_f32_bf16 v{SX+i}, v{XF[fs]+4*i+r}, s36, v{SX+i}")
        for j in range(TN):
            for r in range(4):
                a(f"v_dot2_f32_bf16 v{CS+j}, v{WF[fs]+4*j+r}, s36, v{CS+j}")
    def mfmas(fs):
        for j in range(TN):
            for i in range(TM):
                acc = ACC + 16 * (j * TM + i)
                a(f"v_mfma_f32_32x32x16_bf16 {vr(acc,16)}, {vr(WF[fs]+4*j,4)}, {vr(XF[fs]+4*i,4)}, {vr(acc,16)}")

    dma(0)
    a("s_mov_b32 s48, 0")
    a.label(f"{name}_loop")
    for buf in range(2):
        a("s_waitcnt vmcnt(0)")
        a("s_barrier")
        a(f"s_cmp_ge_u32 s48, {4 - buf}" if False else f"s_add_u32 s3, s48, {buf}")
        a(f"s_cmp_ge_u32 s3, 9")
        a(f"s_cbranch_scc1 {name}_nopf{buf}")
        dma(1 - buf)
        a.label(f"{name}_nopf{buf}")
        reads(buf, 0, 0)
        for s in range(4):
            a("s_waitcnt lgkmcnt(0)")
            if s < 3:
                reads(buf, s + 1, (s + 1) & 1)
            mfmas(s & 1)
            stats(s & 1)
    a("s_add_u32 s48, s48, 2")
    a("s_cmp_lt_u32 s48, 10")
    a(f"s_cbranch_scc1 {name}_loop")
    a("s_nop 15")
    a("s_nop 7")
    a("v_and_b32 v4, 31, v1")
    a("v_and_b32 v5, 1, v2")
    a(f"v_mul_u32_u24 v5, {TM*32}, v5")
    a("v_add3_u32 v4, v4, v5, s34")
    a("v_lshrrev_b32 v5, 1, v2")
    a(f"v_mul_u32_u24 v5, {TN*32}, v5")
    a("v_lshl_add_u32 v5, v3, 2, v5")
    a("v_add_u32 v5, s35, v5")
    if is_qkv:
        for i in range(TM):
            for reg in (SX + i, SXX + i):
                a(f"v_mov_b32 v6, v{reg}")
                a("s_nop 1")
                a(f"v_permlane32_swap_b32 v6, v{reg}")
                a("s_nop 1")
                a(f"v_add_f32 v{reg}, v{reg}, v6")
        for j in range(TN):
            reg = CS + j
            a(f"v_mov_b32 v6, v{reg}")
            a("s_nop 1")
            a(f"v_permlane32_swap_b32 v6, v{reg}")
            a("s_nop 1")
            a(f"v_add_f32 v{reg}, v{reg}, v6")
        inv = f32bits(1.0 / 640)
        a(f"s_mov_b32 s3, {inv:#x}")
        for i in range(TM):
            a(f"v_mul_f32 v{SX+i}, s3, v{SX+i}")
            a(f"v_mul_f32 v{SXX+i}, s3, v{SXX+i}")
            a(f"v_fma_f32 v{SXX+i}, -v{SX+i}, v{SX+i}, v{SXX+i}")
            a(f"v_max_f32 v{SXX+i}, 0, v{SXX+i}")
            a(f"v_add_f32 v{SXX+i}, {f32bits(1e-5):#x}, v{SXX+i}")
            a(f"v_rsq_f32 v{SXX+i}, v{SXX+i}")
        a(f"v_lshlrev_b32 v6, 2, v1")
        a(f"v_mul_u32_u24 v7, {256*TN}, v2")
        a(f"v_add_u32 v6, v6, v7")
        a(f"v_add_u32 v6, {STAT_LDS}, v6")
        for j in range(TN):
            a(f"ds_write_b32 v6, v{CS+j} offset:{256*j}")
        a("s_waitcnt lgkmcnt(0)")
        a(f"v_lshlrev_b32 v6, 4, v3")
        a(f"v_add3_u32 v6, v6, v7, 0")
        a(f"v_add_u32 v6, {STAT_LDS}, v6")
        for j in range(TN):
            for q in range(4):
                a(f"ds_read_b128 {vr(32+16*j+4*q,4)}, v6 offset:{256*j + 32*q}")
        a("s_waitcnt lgkmcnt(0)")
        a(f"s_mov_b32 s49, {f32bits(QSCALE):#x}"); a("s_mov_b32 s56, 640")
    for j in range(TN):
        for i in range(TM):
            acc = ACC + 16 * (j * TM + i)
            a(f"v_add_u32 v8, {32*i}, v4")
            if is_qkv:
                for r in range(16):
                    a(f"v_fma_f32 v{acc+r}, -v{SX+i}, v{32+16*j+r}, v{acc+r}")
                    a(f"v_mul_f32 v{acc+r}, v{SXX+i}, v{acc+r}")
            for q in range(4):
                a(f"v_add_u32 v9, {32*j+8*q}, v5")
                if mode in ('oprojA', 'oprojB'):
                    a("v_mul_u32_u24 v10, 1280, v8")
                    a("v_lshl_add_u32 v10, v9, 1, v10")
                    a(f"buffer_load_dwordx2 v[12:13], v10, s[24:27], 0 offen")
                    a(f"v_cvt_pk_bf16_f32 v14, v{acc+4*q}, v{acc+4*q+1}")
                    a(f"v_cvt_pk_bf16_f32 v15, v{acc+4*q+2}, v{acc+4*q+3}")
                    a("s_waitcnt vmcnt(0)")
                    for t in range(2):
                        a(f"v_lshlrev_b32 v16, 16, v{14+t}")
                        a(f"v_and_b32 v17, 0xffff0000, v{14+t}")
                        a(f"v_lshlrev_b32 v18, 16, v{12+t}")
                        a(f"v_and_b32 v19, 0xffff0000, v{12+t}")
                        a("v_add_f32 v16, v16, v18")
                        a("v_add_f32 v17, v17, v19")
                        a(f"v_cvt_pk_bf16_f32 v{14+t}, v16, v17")
                    a("buffer_store_dwordx2 v[14:15], v10, s[20:23], 0 offen")
                else:
                    emit_qkv_store(a, mode, acc + 4 * q, NBN)
    a("s_waitcnt vmcnt(0)")
    a.label(f"{name}_done")
    a("s_endpgm")
    return dict(name=name, grid=NWG, lds=lds, vgpr=ACC + TM * TN * 16, sgpr=64)

def emit_qkv_store(a, mode, r0, NBN):
    if mode == 'qkvA':
        qn = 640
    else:
        qn = 640
    a(f"v_cmp_gt_u32 vcc, 640, v9")
    a("s_and_saveexec_b64 s[50:51], vcc")
    for r in range(4):
        a(f"v_mul_f32 v{16+r}, s49, v{r0+r}")
    a("v_cvt_pk_bf16_f32 v14, v16, v17")
    a("v_cvt_pk_bf16_f32 v15, v18, v19")
    a("v_mul_u32_u24 v10, 1280, v8")
    a("v_lshl_add_u32 v10, v9, 1, v10")
    a("buffer_store_dwordx2 v[14:15], v10, s[20:23], 0 offen")
    a("s_mov_b64 exec, s[50:51]")
    a(f"v_cvt_pk_bf16_f32 v14, v{r0}, v{r0+1}")
    a(f"v_cvt_pk_bf16_f32 v15, v{r0+2}, v{r0+3}")
    if mode == 'qkvA':
        a("v_subrev_u32 v11, 640, v9")
        a("v_mov_b32 v12, 0")
        a("v_and_b32 v13, 31, v11")
        a("v_lshrrev_b32 v11, 5, v11")
    else:
        a("v_subrev_u32 v11, 640, v9")
        a("v_cmp_le_u32 vcc, 640, v11")
        a("s_nop 1")
        a("v_cndmask_b32 v16, 0, 1, vcc")
        a("v_mul_u32_u24 v17, 640, v16")
        a("v_sub_u32 v17, v11, v17")
        a("v_lshrrev_b32 v18, 2, v17")
        a("v_mul_u32_u24 v12, 52429, v18")
        a("v_lshrrev_b32 v12, 18, v12")
        a("v_mul_u32_u24 v13, 20, v12")
        a("v_sub_u32 v13, v17, v13")
        a("v_mov_b32 v11, v16")
    a("v_cmp_le_u32 vcc, 640, v9")
    a("v_cmp_gt_u32 s[52:53], 20, v13")
    a("s_nop 1")
    a("s_and_b64 vcc, vcc, s[52:53]")
    a("s_and_saveexec_b64 s[50:51], vcc")
    a("v_lshlrev_b32 v16, 17, v12")
    a("v_lshl_add_u32 v16, v8, 6, v16")
    a("v_lshrrev_b32 v17, 3, v13")
    a("v_lshrrev_b32 v18, 2, v8")
    a("v_and_b32 v18, 3, v18")
    a("v_xor_b32 v17, v17, v18")
    a("v_lshl_add_u32 v17, v17, 4, v16")
    a("v_and_b32 v18, 7, v13")
    a("v_lshl_add_u32 v17, v18, 1, v17")
    a("v_lshl_add_u32 v16, v13, 1, v16")
    a("v_cmp_eq_u32 vcc, 0, v11")
    a("s_and_saveexec_b64 s[52:53], vcc")
    a("buffer_store_dwordx2 v[14:15], v17, s[24:27], 0 offen")
    a("v_cmp_eq_u32 vcc, 16, v13")
    a("s_and_saveexec_b64 s[54:55], vcc")
    a("v_mov_b32 v18, 0"); a("v_mov_b32 v19, 0")
    a("buffer_store_dwordx2 v[18:19], v17, s[24:27], 0 offen offset:8")
    a("v_lshrrev_b32 v18, 2, v8")
    a("v_and_b32 v18, 3, v18")
    a("v_xor_b32 v18, 3, v18")
    a("v_and_b32 v19, 0xffffffc0, v17")
    a("v_lshl_add_u32 v18, v18, 4, v19")
    a("v_mov_b32 v28, 0"); a("v_mov_b32 v29, 0"); a("v_mov_b32 v30, 0"); a("v_mov_b32 v31, 0")
    a("buffer_store_dwordx4 v[28:31], v18, s[24:27], 0 offen")
    a("s_mov_b64 exec, s[50:51]")
    a("v_cmp_ne_u32 vcc, 0, v11")
    a("v_cmp_le_u32 s[52:53], s56, v9")
    a("s_and_b64 vcc, vcc, s[52:53]")
    a("v_cmp_gt_u32 s[52:53], 20, v13")
    a("s_nop 1")
    a("s_and_b64 vcc, vcc, s[52:53]")
    a("s_and_saveexec_b64 s[52:53], vcc")
    a("buffer_store_dwordx2 v[14:15], v16, s[28:31], 0 offen")
    a("v_cmp_eq_u32 vcc, 16, v13")
    a("s_and_saveexec_b64 s[54:55], vcc")
    a("v_mov_b32 v18, 0x3f80"); a("v_mov_b32 v19, 0")
    a("buffer_store_dwordx2 v[18:19], v16, s[28:31], 0 offen offset:8")
    a("s_mov_b64 exec, -1")
```

```python
import sys
from asmlib import *
from gemm import *
from attn import *

hdr = open('interleave_layers__grouped_kv_mqa__sliding_block__prompt.s.ref').read().split('\n')
hdr = [l for l in hdr if l.startswith(';') and '@launch' not in l and 'Override' not in l and 'grid=ceil' not in l]
a = Asm()
P = "il_"
ks = []
xs = [('arg', KA['A_x']), ('ws', X1), ('ws', X2), ('ws', X3), ('arg', KA['out'])]
launch = []
body = Asm()
for L in range(2):
    xa, xb, xc = xs[2*L], xs[2*L+1], xs[2*L+2]
    k = gemm_kernel(body, f"{P}qkvA{L}_kernel", 'qkvA', 128, 64, xa); ks.append(k); launch.append(k)
    if L == 0:
        k = attnA_kernel(body, f"{P}attnA_kernel"); ks.append(k); kA = k
    launch.append(kA)
    k = gemm_kernel(body, f"{P}opA{L}_kernel", 'oprojA', 128, 64, xa, xb); ks.append(k); launch.append(k)
    k = gemm_kernel(body, f"{P}qkvB{L}_kernel", 'qkvB', 128, 128, xb); ks.append(k); launch.append(k)
    if L == 0:
        k = attnB_kernel(body, f"{P}attnB_kernel"); ks.append(k); kB = k
    launch.append(kB)
    k = gemm_kernel(body, f"{P}opB{L}_kernel", 'oprojB', 128, 64, xb, xc); ks.append(k); launch.append(k)
out = "\n".join(hdr) + "\n"
for k in launch:
    out += f"; @launch kernel={k['name']} grid=({k['grid']},1,1) block=({k.get('block',256)},1,1) lds={k['lds']}\n"
out += '.amdgcn_target "amdgcn-amd-amdhsa--gfx950"\n.text\n'
out += body.text()
out += '.section .rodata,"a"\n'
for k in ks:
    v = (k['vgpr'] + 3) // 4 * 4
    out += f""".p2align 6
.amdhsa_kernel {k['name']}
  .amdhsa_next_free_vgpr {v}
  .amdhsa_next_free_sgpr {k['sgpr']}
  .amdhsa_accum_offset {v}
  .amdhsa_group_segment_fixed_size 0
  .amdhsa_kernarg_size 88
  .amdhsa_user_sgpr_count 2
  .amdhsa_user_sgpr_kernarg_segment_ptr 1
  .amdhsa_system_sgpr_workgroup_id_x 1
.end_amdhsa_kernel
"""
open('interleave_layers__grouped_kv_mqa__sliding_block__prompt.s', 'w').write(out)
print("written", len(out))
```
